```python
import torch

def _softmax(x, axis=-1):
    return torch.softmax(x, dim=axis)
def _gelu(x):
    return torch.nn.functional.gelu(x, approximate="tanh")
def _silu(x):
    return torch.nn.functional.silu(x)
def _sigmoid(x):
    return torch.sigmoid(x)
def _layernorm(x, axis=-1, eps=1e-5):
    m = x.mean(dim=axis, keepdim=True)
    v = x.var(dim=axis, keepdim=True, unbiased=False)
    return (x - m) / torch.sqrt(v + eps)
def _scatter_add(tgt, idx, src, axis=0):
    return tgt.clone().index_add_(axis, idx, src)
def _segment_sum(src, seg, n):
    out = torch.zeros((n,) + src.shape[1:], dtype=src.dtype)
    return out.index_add_(0, seg, src)
def _pad(x, pw):
    flat = tuple(v for pair in reversed(pw) for v in pair)
    return torch.nn.functional.pad(x, flat)

kernel_name = 'recurrent_scan__spectral_fnet__glu_gated_geglu__prompt'

def setup_inputs():

    _w = (lambda a: (lambda t: t.to(torch.bfloat16) if t.is_floating_point() else t)(torch.as_tensor(a)))
    def _A_setup():
        B, S, D = 1, 2048, 512
        ns = torch.arange(S)[:, None] * torch.arange(S)[None, :]
        nd = torch.arange(D)[:, None] * torch.arange(D)[None, :]
        Ws_re = torch.cos(-2.0 * torch.pi * ns / S).to(float)
        Ws_im = torch.sin(-2.0 * torch.pi * ns / S).to(float)
        Wd_re = torch.cos(-2.0 * torch.pi * nd / D).to(float)
        Wd_im = torch.sin(-2.0 * torch.pi * nd / D).to(float)
        return {
            "x": _w((lambda *s: torch.randn(*s, dtype=torch.bfloat16) * 0.05)(B, S, D)),
            "dft_seq_re": _w(Ws_re),
            "dft_seq_im": _w(Ws_im),
            "dft_hid_re": _w(Wd_re),
            "dft_hid_im": _w(Wd_im),
        }
    _A_in = _A_setup()

    def _B_setup():
        B, S, Dm, Df = 1, 2048, 512, 1376
        return {
            "x": _w((lambda *s: torch.randn(*s, dtype=torch.bfloat16) * 0.05)(B, S, Dm)),
            "w_gate": _w((lambda *s: torch.randn(*s, dtype=torch.bfloat16) * 0.05)(Dm, Df) * (Dm ** -0.5)),
            "w_up": _w((lambda *s: torch.randn(*s, dtype=torch.bfloat16) * 0.05)(Dm, Df) * (Dm ** -0.5)),
            "w_down": _w((lambda *s: torch.randn(*s, dtype=torch.bfloat16) * 0.05)(Df, Dm) * (Df ** -0.5)),
        }
    _B_in = _B_setup()

    return {
        "A_x": _A_in["x"],
        "A_dft_seq_re": _A_in["dft_seq_re"],
        "A_dft_seq_im": _A_in["dft_seq_im"],
        "A_dft_hid_re": _A_in["dft_hid_re"],
        "A_dft_hid_im": _A_in["dft_hid_im"],
        "B_x": _B_in["x"],
        "B_w_gate": _B_in["w_gate"],
        "B_w_up": _B_in["w_up"],
        "B_w_down": _B_in["w_down"],
    }

def reference(A_x, A_dft_seq_re, A_dft_seq_im, A_dft_hid_re, A_dft_hid_im, B_x, B_w_gate, B_w_up, B_w_down):
    def _A_ref(x, dft_seq_re, dft_seq_im, dft_hid_re, dft_hid_im):
        a = torch.einsum("bsd,ed->bse", x, dft_hid_re)
        b = torch.einsum("bsd,ed->bse", x, dft_hid_im)
        y = torch.einsum("ts,bse->bte", dft_seq_re, a) - torch.einsum("ts,bse->bte", dft_seq_im, b)
        return y

    def _B_ref(x, w_gate, w_up, w_down):
        g = torch.einsum("bsd,df->bsf", x, w_gate)
        u = torch.einsum("bsd,df->bsf", x, w_up)
        h = _gelu(g) * u
        return torch.einsum("bsf,fd->bsd", h, w_down)

    x = A_x
    xn = _layernorm(x, axis=-1)
    s = _A_ref(xn, A_dft_seq_re, A_dft_seq_im, A_dft_hid_re, A_dft_hid_im)
    g = _silu(_B_ref(xn, B_w_gate, B_w_up, B_w_down))
    return x + s * g
```

```python
NAME = 'recurrent_scan__spectral_fnet__glu_gated_geglu__prompt'
class Asm:
    def __init__(self):
        self.lines = []
    def __call__(self, s=''):
        for l in s.split('\n'):
            self.lines.append('    ' + l.strip() if l.strip() and not l.strip().endswith(':') else l.strip())
    def c(self, s):
        self.lines.append('    ; ' + s)
    def label(self, s):
        self.lines.append(s + ':')
    def text(self):
        return '\n'.join(self.lines) + '\n'

def header(launches):
    s = open('cdna_kernels/%s.s.ref' % NAME).read().split('\n')
    out = [l for l in s if l.startswith(';') and '@launch' not in l and 'Override launch' not in l and 'grid=ceil' not in l]
    for l in launches:
        out.append(l)
    out.append('.amdgcn_target "amdgcn-amd-amdhsa--gfx950"')
    out.append('.text')
    return '\n'.join(out) + '\n'

def kernel_begin(name):
    return '.globl %s\n.p2align 8\n.type %s,@function\n%s:\n' % (name, name, name)

def descriptor(name, vgpr, accum, sgpr=102, wgy=False):
    s = '.amdhsa_kernel %s\n' % name
    s += '  .amdhsa_next_free_vgpr %d\n  .amdhsa_next_free_sgpr %d\n  .amdhsa_accum_offset %d\n' % (vgpr, sgpr, accum)
    s += '  .amdhsa_group_segment_fixed_size 0\n  .amdhsa_kernarg_size 96\n  .amdhsa_user_sgpr_count 2\n'
    s += '  .amdhsa_user_sgpr_kernarg_segment_ptr 1\n  .amdhsa_system_sgpr_workgroup_id_x 1\n'
    if wgy:
        s += '  .amdhsa_system_sgpr_workgroup_id_y 1\n'
    s += '.end_amdhsa_kernel\n'
    return s

def rodata(descs):
    return '.section .rodata,"a"\n' + ''.join('.p2align 6\n' + d for d in descs)
```

```python
import sys, struct
from g import *

def f2u(x):
    return struct.unpack('<I', struct.pack('<f', x))[0]
def lit(x):
    return '0x%08x' % f2u(x)

H_OFF = 0
Z_OFF = 0x600000
H_SIZE = 64 * 86 * 1024
Z_SIZE = 32 * 16 * 288 * 16
STAMP_OFF = 200 << 20

class K(Asm):
    def __init__(self):
        super().__init__()
        self.vm = []
        self.lg = []
    def vmem(self, s, tag=None):
        self(s); self.vm.append(tag)
    def lds(self, s, tag=None):
        self(s); self.lg.append(tag)
    def _n(self, lst, tag):
        idx = [i for i, t in enumerate(lst) if t == tag]
        if not idx:
            return None
        return len(lst) - 1 - idx[-1]
    def wait(self, vm=None, lg=None):
        parts = []
        if vm is not None:
            n = 0 if vm == 'all' else self._n(self.vm, vm)
            if n is not None and self.vm:
                n = min(n, 63)
                parts.append('vmcnt(%d)' % n)
                self.vm = self.vm[len(self.vm) - n:] if n else []
        if lg is not None:
            n = 0 if lg == 'all' else self._n(self.lg, lg)
            if n is not None and self.lg:
                n = min(n, 15)
                parts.append('lgkmcnt(%d)' % n)
                self.lg = self.lg[len(self.lg) - n:] if n else []
        if parts:
            self('s_waitcnt ' + ' '.join(parts))
    def fork(self):
        return (list(self.vm), list(self.lg))
    def restore(self, st):
        self.vm, self.lg = list(st[0]), list(st[1])

STAMPS = '--stamps' in sys.argv
def stamp(a, i):
    if STAMPS:
        a('s_memrealtime s[%d:%d]' % (80 + 2 * i, 81 + 2 * i))
def stamp_flush(a, n, wsreg, which):
    if not STAMPS:
        return
    L = 'L_ns_%d' % len(a.lines)
    a('s_and_b32 s78, s3, 3')
    a('s_cmp_lg_u32 s78, 0')
    a('s_cbranch_scc1 ' + L)
    a('s_waitcnt lgkmcnt(0)')
    a('s_lshl_b32 s78, s2, 7')
    a('s_lshr_b32 s79, s3, 2')
    a('s_lshl_b32 s79, s79, 6')
    a('s_add_u32 s78, s78, s79')
    a('s_add_u32 s78, s78, %d' % (STAMP_OFF + which * 512 * 64))
    a('v_mov_b32 v2, s78')
    a('s_mov_b64 exec, 1')
    for i in range(n):
        a('v_mov_b32 v4, s%d' % (80 + 2 * i))
        a('v_mov_b32 v5, s%d' % (81 + 2 * i))
        a('global_store_dwordx2 v2, v[4:5], s[%d:%d] offset:%d' % (wsreg, wsreg + 1, i * 8))
        a('s_nop 1')
    a.label(L)

X0 = 0
ACC = 128
BF = 192
V_VOFFA = 224
V_AR = 225
V_VB = 229
V_TR = 233
V_R = 234
V_NMR = 235
V_SUM = 236
V_SQ = 238
V_T = 240
V_LANE = 252
V_ST = 253
SLOT = [131072, 0, 32768, 65536, 98304]
PD = 2

def k1_role(a, dft, hf):
    T = (4 if hf == 0 else (2 if dft else 3))
    nb = 3 if (dft or hf == 0) else 4
    rowb = 192 if dft else 224
    q0 = 0 if (dft or hf == 0) else 3
    npc = 12 if dft else 14
    magic = 5462 if dft else 4682
    gstride = 1024 if dft else 2752
    def issueA(g):
        for cc in range(2):
            c = 2 * g + cc
            a('s_add_u32 s30, s8, %d' % c)
            a('s_and_b32 s30, s30, 7')
            a('s_lshl_b32 s30, s30, 7')
            a('s_add_u32 s30, s30, s24')
            for z in range(2):
                a('s_add_u32 m0, s25, %d' % (c * 16384 + z * 2048))
                if z:
                    a('s_add_u32 s30, s30, 0x100000')
                else:
                    a('s_nop 0')
                a.vmem('buffer_load_dwordx4 v%d, s[12:15], s30 offen lds' % V_VOFFA, 'A%d' % g)
    def issueB_list(s):
        out = []
        def first():
            a('s_add_u32 s31, s8, %d' % s)
            a('s_and_b32 s31, s31, 7')
            a('s_mul_i32 s31, s31, %d' % (64 * gstride))
            a('s_add_u32 s31, s31, s26')
        for n in range(nb):
            def f(n=n):
                if n == 0:
                    first()
                a('s_add_u32 m0, s27, %d' % (SLOT[s % 5] + (q0 + n) * 1024))
                a('s_nop 0')
                a.vmem('buffer_load_dwordx4 v%d, s[16:19], s31 offen lds' % (V_VB + n), 'B%d' % s)
            out.append(f)
        return out
    issueA(0)
    issueA(1)
    for n in range(nb):
        q = q0 + n
        a('v_add_u32 v%d, %d, v%d' % (V_T, 64 * q, V_LANE))
        a('v_mul_u32_u24 v%d, %d, v%d' % (V_T + 1, magic, V_T))
        a('v_lshrrev_b32 v%d, 16, v%d' % (V_T + 1, V_T + 1))
        a('v_mul_u32_u24 v%d, %d, v%d' % (V_T + 2, npc, V_T + 1))
        a('v_sub_u32 v%d, v%d, v%d' % (V_T + 2, V_T, V_T + 2))
        a('v_mul_u32_u24 v%d, %d, v%d' % (V_T + 1, gstride, V_T + 1))
        a('v_lshl_add_u32 v%d, v%d, 4, v%d' % (V_VB + n, V_T + 2, V_T + 1))
    a('v_lshrrev_b32 v%d, 5, v%d' % (V_T, V_LANE))
    a('v_bfe_u32 v%d, v%d, 2, 2' % (V_T + 1, V_LANE))
    a('v_lshl_add_u32 v%d, v%d, 3, v%d' % (V_T, V_T, V_T + 1))
    a('v_mul_u32_u24 v%d, %d, v%d' % (V_T, rowb, V_T))
    a('v_bfe_u32 v%d, v%d, 4, 1' % (V_T + 1, V_LANE))
    a('v_mul_u32_u24 v%d, %d, v%d' % (V_T + 1, 32 if dft else 14464, V_T + 1))
    a('v_and_b32 v%d, 3, v%d' % (V_T + 2, V_LANE))
    a('v_lshl_add_u32 v%d, v%d, 3, v%d' % (V_T, V_T + 2, V_T))
    a('v_add3_u32 v%d, v%d, v%d, s28' % (V_TR, V_T, V_T + 1))
    a('v_and_b32 v%d, 31, v%d' % (V_T, V_LANE))
    a('v_lshrrev_b32 v%d, 5, v%d' % (V_T + 1, V_LANE))
    a('v_bfe_u32 v%d, v%d, 1, 3' % (V_T + 2, V_LANE))
    a('v_xor_b32 v%d, v%d, v%d' % (V_T + 1, V_T + 1, V_T + 2))
    a('v_lshlrev_b32 v%d, 4, v%d' % (V_T + 1, V_T + 1))
    a('v_lshl_add_u32 v%d, v%d, 7, s29' % (V_T, V_T))
    for kk in range(4):
        a('v_xor_b32 v%d, %d, v%d' % (V_T + 2, kk * 32, V_T + 1))
        a('v_add_u32 v%d, v%d, v%d' % (V_AR + kk, V_T, V_T + 2))
    for r in (V_SUM, V_SUM + 1, V_SQ, V_SQ + 1):
        a('v_mov_b32 v%d, 0' % r)
    stamp(a, 1)
    def readA(g):
        if g == 2:
            for kk in range(4):
                a('v_add_u32 v%d, 0x10000, v%d' % (V_AR + kk, V_AR + kk))
        for cc in range(2):
            c = 2 * g + cc
            for kk in range(4):
                i = 4 * c + kk
                a.lds('ds_read_b128 v[%d:%d], v%d offset:%d' % (X0 + 4 * i, X0 + 4 * i + 3, V_AR + kk, (c & 3) * 16384), 'X%d' % i)
    def stats(g, extra=()):
        extra = list(extra)
        for ii in range(8):
            i = 8 * g + ii
            a.wait(lg='X%d' % i)
            for d in range(4):
                v = X0 + 4 * i + d
                a('v_dot2c_f32_bf16 v%d, s33, v%d' % (V_SUM + (d & 1), v))
                a('v_dot2c_f32_bf16 v%d, v%d, v%d' % (V_SQ + (d & 1), v, v))
            if extra and ii % 2 == 1:
                extra.pop(0)()
        for f in extra:
            f()
    for g in range(4):
        a.wait(vm='A%d' % g)
        a('s_barrier')
        readA(g)
        if g < 2:
            issueA(g + 2)
            stats(g)
        elif g == 2:
            for f in issueB_list(0):
                f()
            stats(g)
        else:
            stamp(a, 2)
            stats(g, issueB_list(1))
    t = V_T
    a('s_nop 2')
    a('v_add_f32 v%d, v%d, v%d' % (V_SUM, V_SUM, V_SUM + 1))
    a('v_add_f32 v%d, v%d, v%d' % (V_SQ, V_SQ, V_SQ + 1))
    a('v_mov_b32 v%d, v%d' % (V_SUM + 1, V_SUM))
    a('v_mov_b32 v%d, v%d' % (V_SQ + 1, V_SQ))
    a('s_nop 1')
    a('v_permlane32_swap_b32 v%d, v%d' % (V_SUM, V_SUM + 1))
    a('v_permlane32_swap_b32 v%d, v%d' % (V_SQ, V_SQ + 1))
    a('s_nop 1')
    a('v_add_f32 v%d, v%d, v%d' % (V_SUM, V_SUM, V_SUM + 1))
    a('v_add_f32 v%d, v%d, v%d' % (V_SQ, V_SQ, V_SQ + 1))
    a('v_mul_f32 v%d, %s, v%d' % (V_SUM, lit(1 / 512), V_SUM))
    a('v_mul_f32 v%d, %s, v%d' % (V_SQ, lit(1 / 512), V_SQ))
    a('v_fma_f32 v%d, -v%d, v%d, v%d' % (V_SQ, V_SUM, V_SUM, V_SQ))
    a('v_max_f32 v%d, 0, v%d' % (V_SQ, V_SQ))
    a('v_cvt_pk_bf16_f32 v%d, v%d, v%d' % (t, V_SUM, V_SQ))
    a('v_and_b32 v%d, s32, v%d' % (t + 1, t))
    a('v_lshlrev_b32 v%d, 16, v%d' % (t, t))
    a('v_add_f32 v%d, %s, v%d' % (t + 1, lit(1e-5), t + 1))
    a('v_cvt_pk_bf16_f32 v%d, v%d, v%d' % (t + 1, t + 1, t + 1))
    a('v_and_b32 v%d, s32, v%d' % (t + 1, t + 1))
    a('v_sqrt_f32 v%d, v%d' % (t + 1, t + 1))
    a('s_nop 0')
    a('v_cvt_pk_bf16_f32 v%d, v%d, v%d' % (t + 1, t + 1, t + 1))
    a('v_and_b32 v%d, s32, v%d' % (t + 1, t + 1))
    a('v_rcp_f32 v%d, v%d' % (V_R, t + 1))
    a('s_nop 0')
    a('v_mul_f32 v%d, v%d, v%d' % (V_NMR, t, V_R))
    a('v_sub_f32 v%d, 0, v%d' % (V_NMR, V_NMR))
    def norm_list(i):
        out = []
        for d2 in range(2):
            va, vb = X0 + 4 * i + 2 * d2, X0 + 4 * i + 2 * d2 + 1
            t0 = V_T + 4 * d2
            out += ['v_lshlrev_b32 v%d, 16, v%d' % (t0, va),
                    'v_and_b32 v%d, s32, v%d' % (t0 + 1, va),
                    'v_lshlrev_b32 v%d, 16, v%d' % (t0 + 2, vb),
                    'v_and_b32 v%d, s32, v%d' % (t0 + 3, vb)]
            out += ['v_fma_f32 v%d, v%d, v%d, v%d' % (t0 + z, t0 + z, V_R, V_NMR) for z in range(4)]
            out += ['v_cvt_pk_bf16_f32 v%d, v%d, v%d' % (va, t0, t0 + 1),
                    'v_cvt_pk_bf16_f32 v%d, v%d, v%d' % (vb, t0 + 2, t0 + 3)]
        return out
    def tile_off(t):
        if dft:
            et = (0 if hf == 0 else 2) + (t >> 1)
            return (t & 1) * 12288 + et * 64
        return (4 * hf + t) * 32
    def readB(i, t):
        ks = i & 3
        b = BF + (i & 1) * 16 + t * 4
        for rd in range(2):
            a.lds('ds_read_b64_tr_b16 v[%d:%d], v%d offset:%d' % (b + 2 * rd, b + 2 * rd + 1, V_TR,
                  (16 * ks + 4 * rd) * rowb + tile_off(t)), 'F%d_%d' % (i, t))
    def mfma(i, t):
        b = BF + (i & 1) * 16 + t * 4
        acc = 'v[%d:%d]' % (ACC + 16 * t, ACC + 16 * t + 15)
        W = 'v[%d:%d]' % (b, b + 3)
        X = 'v[%d:%d]' % (X0 + 4 * i, X0 + 4 * i + 3)
        s0, s1 = (X, W) if dft else (W, X)
        a('v_mfma_f32_32x32x16_bf16 %s, %s, %s, %s' % (acc, s0, s1, '0' if i == 0 else acc))
    a.wait(vm='B0')
    a('s_barrier')
    for t in range(T):
        readB(0, t)
    for s in norm_list(0):
        a(s)
    stamp(a, 3)
    a('s_nop 1')
    pend = []
    for i in range(32):
        s = i >> 2
        if (i & 3) == 0 and s + PD < 8:
            pend = issueB_list(s + PD)
        nl = norm_list(i + 1) if i < 31 else []
        per = (len(nl) + T - 1) // T
        boundary = (i & 3) == 3 and i < 31
        for t in range(T):
            if boundary and t == 0:
                a.wait(lg='all')
            else:
                a.wait(lg='F%d_%d' % (i, t))
            mfma(i, t)
            if boundary and t == 0:
                a('v_add_u32 v%d, 0x%x, v%d' % (V_TR, (SLOT[(s + 1) % 5] - SLOT[s % 5]) & 0xffffffff, V_TR))
                a.wait(vm='B%d' % (s + 1))
                a('s_barrier')
            if i < 31 and t < T - 1:
                readB(i + 1, t)
            if t == T - 1 and pend:
                pend.pop(0)()
            for x in nl[t * per:(t + 1) * per]:
                a(x)
            if i < 31 and t == T - 1:
                readB(i + 1, t)
    assert not pend
    stamp(a, 4)
    a('s_nop 11')
    if not dft:
        k0 = -2.0 * 0.7978845608028654 * 1.4426950408889634
        k1 = k0 * 0.044715
        a('v_mov_b32 v%d, %s' % (V_R, lit(k1)))
        a('v_lshlrev_b32 v%d, 4, v%d' % (V_ST, V_LANE))
        for t in range(T):
            A = ACC + 16 * t
            o = X0 + 8 * (t & 1)
            p = X0 + 16 + 4 * t
            for r in range(8):
                a('v_mul_f32 v%d, v%d, v%d' % (o + r, A + r, A + r))
            for r in range(8):
                a('v_fmaak_f32 v%d, v%d, v%d, %s' % (o + r, o + r, V_R, lit(k0)))
            for r in range(8):
                a('v_mul_f32 v%d, v%d, v%d' % (o + r, o + r, A + r))
            for r in range(8):
                a('v_exp_f32 v%d, v%d' % (o + r, o + r))
            for r in range(8):
                a('v_mul_f32 v%d, v%d, v%d' % (A + r, A + r, A + 8 + r))
            for r in range(8):
                a('v_add_f32 v%d, 1.0, v%d' % (o + r, o + r))
            for r in range(8):
                a('v_rcp_f32 v%d, v%d' % (o + r, o + r))
            a('s_nop 0')
            for r in range(8):
                a('v_mul_f32 v%d, v%d, v%d' % (A + r, A + r, o + r))
            for r in range(4):
                a('v_cvt_pk_bf16_f32 v%d, v%d, v%d' % (p + r, A + 2 * r, A + 2 * r + 1))
            a.vmem('buffer_store_dwordx4 v[%d:%d], v%d, s[20:23], s34 offen offset:%d' % (p, p + 3, V_ST, t * 1024), 'H')
    else:
        C, S, N = 64, 72, 80
        tf, hb = V_T, V_T + 1
        a('v_and_b32 v%d, 31, v%d' % (tf, V_LANE))
        a('v_cvt_f32_u32 v%d, v%d' % (tf, tf))
        a('v_mul_f32 v%d, %s, v%d' % (tf, lit(1 / 32), tf))
        a('v_lshrrev_b32 v%d, 5, v%d' % (hb, V_LANE))
        a('v_cvt_f32_u32 v%d, v%d' % (hb, hb))
        a('v_mul_f32 v%d, 4.0, v%d' % (hb, hb))
        a('v_mul_f32 v%d, v%d, v%d' % (hb, hb, tf))
        for kap in range(2):
            for j in range(8):
                cj = (j & 3) + 8 * (j >> 2) + 16 * kap
                a('v_fmamk_f32 v%d, v%d, %s, v%d' % (96 + j, tf, lit(float(cj)), hb))
            for j in range(8):
                a('v_fract_f32 v%d, v%d' % (96 + j, 96 + j))
            for j in range(8):
                a('v_cos_f32 v%d, v%d' % (104 + j, 96 + j))
            for j in range(8):
                a('v_sin_f32 v%d, v%d' % (96 + j, 96 + j))
            a('s_nop 0')
            for j in range(4):
                a('v_cvt_pk_bf16_f32 v%d, v%d, v%d' % (C + 4 * kap + j, 104 + 2 * j, 105 + 2 * j))
                a('v_cvt_pk_bf16_f32 v%d, v%d, v%d' % (S + 4 * kap + j, 96 + 2 * j, 97 + 2 * j))
            for j in range(4):
                a('v_xor_b32 v%d, 0x80008000, v%d' % (N + 4 * kap + j, S + 4 * kap + j))
        a('v_lshrrev_b32 v%d, 5, v%d' % (V_T, V_LANE))
        a('v_mul_u32_u24 v%d, %d, v%d' % (V_T, 4 * 96, V_T))
        a('v_and_b32 v%d, 31, v%d' % (V_T + 1, V_LANE))
        a('v_add_u32 v%d, v%d, v%d' % (V_T, V_T, V_T + 1))
        a('v_lshl_add_u32 v%d, v%d, 4, s35' % (V_ST, V_T))
        ne = T // 2
        for e in range(ne):
            Aa, Ab = ACC + 32 * e, ACC + 32 * e + 16
            pa, pb = BF + 16 * e, BF + 16 * e + 8
            for r in range(8):
                a('v_cvt_pk_bf16_f32 v%d, v%d, v%d' % (pa + r, Aa + 2 * r, Aa + 2 * r + 1))
            for r in range(8):
                a('v_cvt_pk_bf16_f32 v%d, v%d, v%d' % (pb + r, Ab + 2 * r, Ab + 2 * r + 1))
            a('s_nop 1')
            zr, zi = 32 * e, 32 * e + 16
            def mm(d, x, y, first):
                a('v_mfma_f32_32x32x16_bf16 v[%d:%d], v[%d:%d], v[%d:%d], %s' % (d, d + 15, x, x + 3, y, y + 3, '0' if first else 'v[%d:%d]' % (d, d + 15)))
            mm(zr, C, pa, True); mm(zi, C, pb, True)
            mm(zr, C + 4, pa + 4, False); mm(zi, C + 4, pb + 4, False)
            mm(zr, S, pb, False); mm(zi, N, pa, False)
            mm(zr, S + 4, pb + 4, False); mm(zi, N + 4, pa + 4, False)
        for k in range(3):
            a('v_add_u32 v%d, %d, v%d' % (V_T, 64 * k, V_LANE))
            a('v_cmp_le_u32 vcc, 96, v%d' % V_T)
            a('v_mov_b32 v%d, 0' % (V_T + 1))
            a('v_mov_b32 v%d, %d' % (V_T + 2, 16 * 288 - 96))
            a('v_cndmask_b32 v%d, v%d, v%d, vcc' % (V_T + 1, V_T + 1, V_T + 2))
            a('v_add_lshl_u32 v%d, v%d, v%d, 4' % (V_VB + k, V_T, V_T + 1))
        a('v_lshl_add_u32 v%d, v%d, 4, s36' % (V_TR, V_LANE))
        a('s_nop 7')
        for e in range(ne):
            zr, zi = 32 * e, 32 * e + 16
            et = (0 if hf == 0 else 2) + e
            for r in range(16):
                a('v_cvt_pk_bf16_f32 v%d, v%d, v%d' % (zr + r, zr + r, zi + r))
            for r in range(16):
                a.lds('ds_write_b32 v%d, v%d offset:%d' % (V_ST, zr + r, ((r & 3) + 8 * (r >> 2)) * 1536 + et * 512), 'ZW')
        a.wait(lg='all')
        a('s_barrier')
        for k in range(6):
            a.lds('ds_read_b128 v[%d:%d], v%d offset:%d' % (64 + 4 * k, 67 + 4 * k, V_TR, k * 1024), 'ZR%d' % k)
        a('s_add_u32 s37, s34, %d' % (2 * 16 * 288 * 16))
        for k in range(6):
            a.wait(lg='ZR%d' % k)
            a.vmem('buffer_store_dwordx4 v[%d:%d], v%d, s[20:23], s%d offen' % (64 + 4 * k, 67 + 4 * k, V_VB + k % 3, 34 if k < 3 else 37), 'Z')
    stamp(a, 5)
    if STAMPS:
        a.wait(vm='all')
        stamp(a, 6)
        stamp_flush(a, 7, 10, 0)
    a('s_endpgm')

def gen_k1():
    a = K()
    a('s_cmp_ge_u32 s2, 256')
    a('s_cbranch_scc1 K1_end')
    stamp(a, 0)
    a('s_load_dwordx2 s[12:13], s[0:1], 0')
    a('s_load_dwordx4 s[40:43], s[0:1], 24')
    a('s_load_dwordx4 s[44:47], s[0:1], 48')
    a('s_load_dwordx2 s[10:11], s[0:1], 88')
    a('v_lshrrev_b32 v1, 6, v0')
    a('v_and_b32 v%d, 63, v0' % V_LANE)
    a('v_readfirstlane_b32 s3, v1')
    a('s_and_b32 s28, s2, 7')
    a('s_lshr_b32 s29, s2, 3')
    a('s_lshr_b32 s6, s28, 1')
    a('s_and_b32 s30, s29, 3')
    a('s_and_b32 s7, s28, 1')
    a('s_lshl_b32 s7, s7, 3')
    a('s_lshr_b32 s31, s29, 2')
    a('s_add_u32 s7, s7, s31')
    a('s_lshl_b32 s8, s30, 1')
    a('s_and_b32 s31, s6, 1')
    a('s_add_u32 s8, s8, s31')
    a('s_add_u32 s8, s8, s7')
    a('s_and_b32 s4, s3, 3')
    a('s_lshr_b32 s5, s3, 2')
    a('s_lshl_b32 s31, s6, 2')
    a('s_add_u32 s31, s31, s30')
    a('s_lshl_b32 s31, s31, 1')
    a('s_and_b32 s32, s4, 1')
    a('s_add_u32 s31, s31, s32')
    a('s_lshr_b32 s32, s4, 1')
    a('s_lshl_b32 s32, s32, 5')
    a('s_add_u32 s31, s31, s32')
    a('s_lshl_b32 s9, s6, 1')
    a('s_and_b32 s32, s30, 1')
    a('s_add_u32 s9, s9, s32')
    a('s_lshr_b32 s32, s30, 1')
    a('s_lshl_b32 s32, s32, 3')
    a('s_add_u32 s9, s9, s32')
    a('s_lshl_b32 s32, s9, 2')
    a('s_add_u32 s32, s32, s4')
    a('s_cmp_lt_u32 s7, 13')
    a('s_cselect_b32 s38, s31, s32')
    a('s_lshl_b32 s24, s38, 10')
    a('s_lshl_b32 s31, s5, 19')
    a('s_add_u32 s24, s24, s31')
    a('s_lshl_b32 s29, s4, 12')
    a('s_lshl_b32 s31, s5, 10')
    a('s_add_u32 s25, s29, s31')
    a('v_lshrrev_b32 v1, 3, v%d' % V_LANE)
    a('v_lshrrev_b32 v2, 1, v1')
    a('s_lshl_b32 s31, s5, 2')
    a('v_add_u32 v2, s31, v2')
    a('v_and_b32 v3, 7, v%d' % V_LANE)
    a('v_xor_b32 v2, v2, v3')
    a('v_lshlrev_b32 v2, 4, v2')
    a('v_lshl_add_u32 v%d, v1, 16, v2' % V_VOFFA)
    a('s_mov_b32 s14, 0x200000')
    a('s_mov_b32 s15, 0x20000')
    a('s_mov_b32 s19, 0x20000')
    a('s_mov_b32 s23, 0x20000')
    a('s_mov_b32 s28, %d' % SLOT[0])
    a('s_mov_b32 s32, 0xffff0000')
    a('s_mov_b32 s33, 0x3f803f80')
    a('s_and_b32 s39, s3, 1')
    a('s_waitcnt lgkmcnt(0)')
    a('s_and_b32 s13, s13, 0xffff')
    a('s_cmp_lt_u32 s7, 13')
    a('s_cbranch_scc0 K1_dft')
    a('s_cmp_eq_u32 s39, 0')
    a('s_cselect_b32 s16, s44, s46')
    a('s_cselect_b32 s17, s45, s47')
    a('s_and_b32 s17, s17, 0xffff')
    a('s_mov_b32 s18, %d' % (512 * 2752))
    a('s_mul_i32 s30, s7, 7')
    a('s_min_u32 s30, s30, 79')
    a('s_bfe_u32 s31, s3, 0x10001')
    a('s_mul_i32 s26, s31, %d' % (32 * 2752))
    a('s_lshl_b32 s34, s30, 5')
    a('s_add_u32 s26, s26, s34')
    a('s_mul_i32 s27, s39, 14464')
    a('s_mul_i32 s31, s31, 7168')
    a('s_add_u32 s27, s27, s31')
    a('s_mov_b32 s20, s10')
    a('s_and_b32 s21, s11, 0xffff')
    a('s_mov_b32 s22, %d' % H_SIZE)
    a('s_mul_i32 s34, s38, 86')
    a('s_add_u32 s34, s34, s30')
    a('s_lshl_b32 s31, s5, 2')
    a('s_add_u32 s34, s34, s31')
    a('s_lshl_b32 s34, s34, 10')
    a('s_cmp_eq_u32 s5, 0')
    a('s_cbranch_scc0 K1_ffn1')
    st = a.fork()
    k1_role(a, False, 0)
    a.label('K1_ffn1')
    a.restore(st)
    k1_role(a, False, 1)
    a.label('K1_dft')
    a.restore(st)
    a('s_cmp_eq_u32 s39, 0')
    a('s_cselect_b32 s16, s40, s42')
    a('s_cselect_b32 s17, s41, s43')
    a('s_and_b32 s17, s17, 0xffff')
    a('s_mov_b32 s18, %d' % (512 * 1024))
    a('s_sub_u32 s30, s7, 13')
    a('s_lshr_b32 s31, s3, 1')
    a('s_lshl_b32 s26, s31, 14')
    a('s_mul_i32 s34, s30, 192')
    a('s_add_u32 s26, s26, s34')
    a('s_mul_i32 s27, s39, 12288')
    a('s_mul_i32 s31, s31, 3072')
    a('s_add_u32 s27, s27, s31')
    a('s_add_u32 s20, s10, %d' % Z_OFF)
    a('s_addc_u32 s21, s11, 0')
    a('s_and_b32 s21, s21, 0xffff')
    a('s_mov_b32 s22, %d' % Z_SIZE)
    a('s_lshl_b32 s34, s3, 6')
    a('s_add_u32 s34, s34, s9')
    a('s_mul_i32 s34, s34, 288')
    a('s_mul_i32 s31, s30, 96')
    a('s_add_u32 s34, s34, s31')
    a('s_lshl_b32 s34, s34, 4')
    a('s_lshl_b32 s35, s4, 2')
    a('s_add_u32 s35, s35, 65536')
    a('s_mul_i32 s36, s3, 6144')
    a('s_add_u32 s36, s36, 65536')
    a('s_cmp_eq_u32 s5, 0')
    a('s_cbranch_scc0 K1_dft1')
    k1_role(a, True, 0)
    a.label('K1_dft1')
    a.restore(st)
    k1_role(a, True, 1)
    a.label('K1_end')
    a('s_endpgm')
    return a.text()

CH = 2
K2_PD = 2
def k2_role(a, fin):
    NS = 20 if fin else 23
    NCH = (23 + CH - 1) // CH
    HF = 0
    ACC2 = 96
    WB = 128
    WF = 160
    ZF = 192
    YA = 224
    XR = 240
    VL, VH, VW, VT0, VT1, VZ, VX = 248, 249, 250, 251, 252, 253, 254
    TMP = 92
    def issue(i):
        if i > 0:
            a('s_add_u32 s30, s30, 1024')
            a('s_cmp_eq_u32 s30, %d' % (86 * 1024))
            a('s_cselect_b32 s30, 0, s30')
        a('s_lshl4_add_u32 s32, s30, s25')
        a('s_add_u32 m0, s26, %d' % ((i % 20) * 2048))
        a('s_add_u32 s31, s30, s24')
        a.vmem('buffer_load_dwordx4 v%d, s[16:19], s32 offen lds' % VW, 'C%d' % (i // CH))
        a.vmem('buffer_load_dwordx4 v[%d:%d], v%d, s[12:15], s31 offen' % (HF + 4 * i, HF + 4 * i + 3, VH), 'C%d' % (i // CH))
    def issue_chunk(c):
        for i in range(c * CH, min((c + 1) * CH, NS)):
            issue(i)
    for c in range(K2_PD):
        issue_chunk(c)
    t = TMP
    a('v_lshrrev_b32 v%d, 5, v%d' % (t, VL))
    a('v_bfe_u32 v%d, v%d, 2, 2' % (t + 1, VL))
    a('v_lshl_add_u32 v%d, v%d, 2, v%d' % (t, t, t + 1))
    a('v_lshl_add_u32 v%d, v%d, 7, s27' % (t, t))
    a('v_and_b32 v%d, 1, v%d' % (t + 2, VL))
    a('v_lshl_add_u32 v%d, v%d, 5, v%d' % (t, t + 2, t))
    a('v_bfe_u32 v%d, v%d, 4, 1' % (t + 2, VL))
    a('v_lshl_add_u32 v%d, v%d, 4, v%d' % (t, t + 2, t))
    a('v_bfe_u32 v%d, v%d, 1, 1' % (t + 2, VL))
    a('v_lshl_add_u32 v%d, v%d, 3, v%d' % (t, t + 2, t))
    a('v_bfe_u32 v%d, v%d, 3, 1' % (t + 2, VL))
    a('v_lshl_add_u32 v%d, v%d, 6, v%d' % (VT0, t + 2, t))
    a('v_xor_b32 v%d, 64, v%d' % (VT1, VT0))
    if fin:
        a('v_and_b32 v%d, 3, v%d' % (t, VL))
        a('v_bfe_u32 v%d, v%d, 2, 1' % (t + 1, VL))
        a('v_lshl_add_u32 v%d, v%d, 4, v%d' % (t, t + 1, t))
        a('v_bfe_u32 v%d, v%d, 3, 2' % (t + 1, VL))
        a('v_lshl_add_u32 v%d, v%d, 2, v%d' % (t, t + 1, t))
        a('v_mul_i32_i24 v%d, s36, v%d' % (t, t))
        a('v_add_u32 v%d, s37, v%d' % (t, t))
        a('v_lshrrev_b32 v%d, 5, v%d' % (t + 1, VL))
        a('v_mul_u32_u24 v%d, %d, v%d' % (t + 2, 8 * 288, t + 1))
        a('v_add_lshl_u32 v%d, v%d, v%d, 4' % (VZ, t, t + 2))
        a('v_and_b32 v%d, 31, v%d' % (t, VL))
        a('v_lshlrev_b32 v%d, 16, v%d' % (t + 2, t))
        a('v_lshl_add_u32 v%d, v%d, 5, v%d' % (VX, t + 1, t + 2))
        tf, hb = t + 2, t + 3
        a('v_lshl_add_u32 v%d, v%d, 6, s28' % (t, t))
        a('v_mul_i32_i24 v%d, s36, v%d' % (t, t))
        a('v_cvt_f32_i32 v%d, v%d' % (tf, t))
        a('v_mul_f32 v%d, %s, v%d' % (tf, lit(1 / 2048), tf))
        a('v_cvt_f32_u32 v%d, v%d' % (hb, t + 1))
        a('v_mul_f32 v%d, %s, v%d' % (hb, lit(32.0), hb))
        a('v_mul_f32 v%d, v%d, v%d' % (hb, hb, tf))
        for blk in range(4):
            A_, B_ = YA, YA + 8
            for j in range(8):
                a('v_fmamk_f32 v%d, v%d, %s, v%d' % (A_ + j, tf, lit(float(8 * blk + j)), hb))
            for j in range(8):
                a('v_fract_f32 v%d, v%d' % (A_ + j, A_ + j))
            for j in range(8):
                a('v_cos_f32 v%d, v%d' % (B_ + j, A_ + j))
            for j in range(8):
                a('v_sin_f32 v%d, v%d' % (A_ + j, A_ + j))
            a('s_nop 0')
            for j in range(8):
                a('v_cvt_pk_bf16_f32 v%d, v%d, v%d' % (WF + 8 * blk + j, B_ + j, A_ + j))
    stamp(a, 1)
    def readW(c):
        for i in range(c * CH, min((c + 1) * CH, NS)):
            for ie in range(2):
                b = WB + (c & 1) * (CH * 8) + (i % CH) * 8 + ie * 4
                for rd in range(2):
                    a.lds('ds_read_b64_tr_b16 v[%d:%d], v%d offset:%d' % (b + 2 * rd, b + 2 * rd + 1, VT0 + ie, (i % 20) * 2048 + rd * 1024), 'W%d_%d' % (i, ie))
    def mm_chunk(c):
        for i in range(c * CH, min((c + 1) * CH, NS)):
            for ie in range(2):
                b = WB + (c & 1) * (CH * 8) + (i % CH) * 8 + ie * 4
                acc = 'v[%d:%d]' % (ACC2 + 16 * ie, ACC2 + 16 * ie + 15)
                a.wait(lg='W%d_%d' % (i, ie))
                a('v_mfma_f32_32x32x16_bf16 %s, v[%d:%d], v[%d:%d], %s' % (acc, b, b + 3, HF + 4 * i, HF + 4 * i + 3, '0' if i == 0 else acc))
    zissued = False
    for c in range(NCH):
        a.wait(vm='C%d' % c)
        a('s_barrier')
        if c == 1:
            stamp(a, 2)
        readW(c)
        if (c + K2_PD) * CH < NS:
            issue_chunk(c + K2_PD)
        elif fin and not zissued:
            zissued = True
            for ks in range(8):
                a('s_add_u32 s31, s33, %d' % (ks * 4608))
                a.vmem('buffer_load_dwordx4 v[%d:%d], v%d, s[20:23], s31 offen' % (ZF + 4 * ks, ZF + 4 * ks + 3, VZ), 'Z%d' % ks)
            for z in range(2):
                a.vmem('buffer_load_dwordx4 v[%d:%d], v%d, s[40:43], s34 offen offset:%d' % (XR + 4 * z, XR + 4 * z + 3, VX, 16 * z), 'X')
        mm_chunk(c)
    stamp(a, 3)
    a('v_lshl_add_u32 v%d, v%d, 4, s35' % (VW, VL))
    a('s_nop 11')
    if fin:
        L1, L2 = 'K2_send1', 'K2_sent'
        a('s_cmp_eq_u32 s5, 0')
        a('s_cbranch_scc1 ' + L1)
        st = a.fork()
        for qd in range(4):
            a.lds('ds_write_b128 v%d, v[%d:%d] offset:%d' % (VW, ACC2 + 4 * qd, ACC2 + 4 * qd + 3, qd * 1024), 'S')
        a('s_nop 1')
        for r in range(16):
            a('v_mov_b32 v%d, v%d' % (ACC2 + r, ACC2 + 16 + r))
        a('s_branch ' + L2)
        a.label(L1)
        a.restore(st)
        for qd in range(4):
            a.lds('ds_write_b128 v%d, v[%d:%d] offset:%d' % (VW, ACC2 + 16 + 4 * qd, ACC2 + 16 + 4 * qd + 3, 4096 + qd * 1024), 'S')
        a.label(L2)
        for ks in range(8):
            a.wait(vm='Z%d' % ks)
            a('v_mfma_f32_32x32x16_bf16 v[%d:%d], v[%d:%d], v[%d:%d], %s' % (YA, YA + 15, ZF + 4 * ks, ZF + 4 * ks + 3, WF + 4 * ks, WF + 4 * ks + 3, '0' if ks == 0 else 'v[%d:%d]' % (YA, YA + 15)))
        a('v_lshl_add_u32 v%d, v%d, 4, s38' % (VT0, VL))
        a('v_lshl_add_u32 v%d, v%d, 4, s39' % (VT1, VL))
        a.wait(lg='all')
        a('s_barrier')
        for sidx in range(3):
            for qd in range(4):
                d = 16 * sidx + 4 * qd
                if sidx == 0:
                    a.lds('ds_read_b128 v[%d:%d], v%d offset:%d' % (d, d + 3, VT0, qd * 1024), 'R%d' % sidx)
                else:
                    a.lds('ds_read_b128 v[%d:%d], v%d offset:%d' % (d, d + 3, VT1, (sidx - 1) * 40960 + qd * 1024), 'R%d' % sidx)
        for sidx in range(3):
            a.wait(lg='R%d' % sidx)
            for r in range(16):
                a('v_add_f32 v%d, v%d, v%d' % (ACC2 + r, ACC2 + r, 16 * sidx + r))
        stamp(a, 4)
        E = 48
        for r in range(16):
            a('v_mul_f32 v%d, %s, v%d' % (E + r, lit(-1.4426950408889634), ACC2 + r))
        for r in range(16):
            a('v_exp_f32 v%d, v%d' % (E + r, E + r))
        for r in range(16):
            a('v_mul_f32 v%d, v%d, v%d' % (ACC2 + r, ACC2 + r, YA + r))
        for r in range(16):
            a('v_add_f32 v%d, 1.0, v%d' % (E + r, E + r))
        for r in range(16):
            a('v_rcp_f32 v%d, v%d' % (E + r, E + r))
        a.wait(vm='X')
        for r in range(8):
            a('v_lshlrev_b32 v%d, 16, v%d' % (64 + 2 * r, XR + r))
            a('v_and_b32 v%d, 0xffff0000, v%d' % (65 + 2 * r, XR + r))
        for r in range(16):
            a('v_fmac_f32 v%d, v%d, v%d' % (64 + r, ACC2 + r, E + r))
        for r in range(8):
            a('v_cvt_pk_bf16_f32 v%d, v%d, v%d' % (80 + r, 64 + 2 * r, 65 + 2 * r))
        for z in range(2):
            a.vmem('buffer_store_dwordx4 v[%d:%d], v%d, s[44:47], s34 offen offset:%d' % (80 + 4 * z, 83 + 4 * z, VX, 16 * z), 'O')
    else:
        for qd in range(8):
            a.lds('ds_write_b128 v%d, v[%d:%d] offset:%d' % (VW, ACC2 + 4 * qd, ACC2 + 4 * qd + 3, qd * 1024), 'S')
        a.wait(lg='all')
        a('s_barrier')
        stamp(a, 4)
    stamp(a, 5)
    if STAMPS:
        a.wait(vm='all')
        stamp(a, 6)
        stamp_flush(a, 7, 10, 1)
    a('s_endpgm')

def gen_k2():
    a = K()
    VL, VH, VW = 248, 249, 250
    a('s_cmp_ge_u32 s2, 256')
    a('s_cbranch_scc1 K2_end')
    stamp(a, 0)
    a('s_load_dwordx2 s[40:41], s[0:1], 0')
    a('s_load_dwordx2 s[16:17], s[0:1], 64')
    a('s_load_dwordx2 s[44:45], s[0:1], 72')
    a('s_load_dwordx2 s[10:11], s[0:1], 88')
    a('v_lshrrev_b32 v1, 6, v0')
    a('v_and_b32 v%d, 63, v0' % VL)
    a('v_readfirstlane_b32 s3, v1')
    a('s_and_b32 s28, s2, 7')
    a('s_lshr_b32 s29, s2, 3')
    a('s_and_b32 s30, s29, 3')
    a('s_lshl_b32 s6, s28, 2')
    a('s_add_u32 s6, s6, s30')
    a('s_lshr_b32 s7, s29, 2')
    a('s_lshl_b32 s8, s30, 1')
    a('s_add_u32 s8, s8, s7')
    a('s_and_b32 s31, s28, 1')
    a('s_add_u32 s8, s8, s31')
    a('s_and_b32 s8, s8, 7')
    a('s_mul_i32 s8, s8, 11')
    a('s_lshr_b32 s8, s8, 2')
    a('s_and_b32 s4, s3, 1')
    a('s_lshr_b32 s5, s3, 1')
    a('s_mul_i32 s30, s5, 20')
    a('s_cmp_eq_u32 s5, 3')
    a('s_cselect_b32 s30, 63, s30')
    a('s_add_u32 s30, s30, s8')
    a('s_lshl_b32 s30, s30, 10')
    a('s_lshl_b32 s28, s4, 5')
    a('s_add_u32 s28, s28, s6')
    a('s_mul_i32 s24, s28, %d' % (86 * 1024))
    a('s_lshl_b32 s25, s4, 13')
    a('s_lshl_b32 s31, s7, 7')
    a('s_add_u32 s25, s25, s31')
    a('s_mul_i32 s27, s5, 40960')
    a('s_lshl_b32 s26, s4, 10')
    a('s_add_u32 s26, s26, s27')
    a('v_lshlrev_b32 v%d, 4, v%d' % (VH, VL))
    a('v_lshrrev_b32 v1, 3, v%d' % VL)
    a('v_bfe_u32 v2, v%d, 4, 1' % VL)
    a('v_lshlrev_b32 v2, 2, v2')
    a('v_and_b32 v3, 7, v%d' % VL)
    a('v_xor_b32 v2, v2, v3')
    a('v_lshlrev_b32 v2, 4, v2')
    a('v_lshl_add_u32 v%d, v1, 10, v2' % VW)
    a('s_mov_b32 s14, %d' % H_SIZE)
    a('s_mov_b32 s15, 0x20000')
    a('s_mov_b32 s18, %d' % (1376 * 1024))
    a('s_mov_b32 s19, 0x20000')
    a('s_mov_b32 s22, %d' % Z_SIZE)
    a('s_mov_b32 s23, 0x20000')
    a('s_mov_b32 s42, 0x200000')
    a('s_mov_b32 s43, 0x20000')
    a('s_mov_b32 s46, 0x200000')
    a('s_mov_b32 s47, 0x20000')
    a('s_lshl_b32 s35, s4, 13')
    a('s_add_u32 s35, s35, 8192')
    a('s_lshl_b32 s31, s5, 12')
    a('s_add_u32 s39, s35, s31')
    a('s_xor_b32 s31, s5, 1')
    a('s_mul_i32 s38, s31, 40960')
    a('s_add_u32 s38, s38, s39')
    a('s_add_u32 s39, s39, 81920')
    a('s_add_u32 s35, s35, s27')
    a('s_lshl_b32 s37, s7, 6')
    a('s_lshl_b32 s31, s5, 5')
    a('s_add_u32 s37, s37, s31')
    a('s_lshl_b32 s34, s28, 10')
    a('s_lshl_b32 s31, s37, 1')
    a('s_add_u32 s34, s34, s31')
    a('s_sub_u32 s31, 512, s37')
    a('s_sub_u32 s32, 32, s6')
    a('s_and_b32 s32, s32, 31')
    a('s_cmp_lt_u32 s7, 4')
    a('s_cselect_b32 s36, 1, -1')
    a('s_cselect_b32 s37, s37, s31')
    a('s_cselect_b32 s33, s6, s32')
    a('s_mul_i32 s33, s33, %d' % (16 * 288 * 16))
    a('s_waitcnt lgkmcnt(0)')
    a('s_mov_b32 s12, s10')
    a('s_and_b32 s13, s11, 0xffff')
    a('s_and_b32 s17, s17, 0xffff')
    a('s_add_u32 s20, s10, %d' % Z_OFF)
    a('s_addc_u32 s21, s11, 0')
    a('s_and_b32 s21, s21, 0xffff')
    a('s_and_b32 s41, s41, 0xffff')
    a('s_and_b32 s45, s45, 0xffff')
    a('s_cmp_lt_u32 s5, 2')
    a('s_cbranch_scc0 K2_nf')
    st = a.fork()
    k2_role(a, True)
    a.label('K2_nf')
    a.restore(st)
    k2_role(a, False)
    a.label('K2_end')
    a('s_endpgm')
    return a.text()

out = [x for x in sys.argv[1:] if not x.startswith('--')][0]
src = header(['; @launch kernel=k1_kernel grid=(256,1,1) block=(512,1,1) lds=163840',
              '; @launch kernel=k2_kernel grid=(256,1,1) block=(512,1,1) lds=163840'])
src += kernel_begin('k1_kernel') + gen_k1()
src += kernel_begin('k2_kernel') + gen_k2()
src += rodata([descriptor('k1_kernel', 256, 256), descriptor('k2_kernel', 256, 256)])
open(out, 'w').write(src)
```

```python
import sys
from g import *
src, out, k, K = sys.argv[1], sys.argv[2], int(sys.argv[3]), int(sys.argv[4])
med = len(sys.argv) > 5
s = open(src).read()
kn = NAME + '_kernel'
s = s.replace('; @launch grid=(256,1,1) block=(512,1,1) lds=163840\n', '; @launch kernel=k1_kernel grid=(256,1,1) block=(512,1,1) lds=163840\n; @launch kernel=dec_kernel grid=(1,1,1) block=(256,1,1) lds=1024\n')
s = s.replace(kn, 'k1_kernel')
a = Asm()
a('s_cmp_ge_u32 s2, 1')
a('s_cbranch_scc1 D_end')
a('s_load_dwordx2 s[10:11], s[0:1], 88')
a('v_lshlrev_b32 v1, 7, v0')
a('v_add_u32 v1, %d, v1' % (200 << 20))
a('v_mov_b32 v4, 0')
a('v_mov_b32 v5, -1')
a('v_mov_b32 v6, 0')
a('ds_write_b64 v4, v[5:6]' if False else 'ds_write_b32 v4, v5')
a('ds_write_b32 v4, v6 offset:4')
a('ds_write_b32 v4, v6 offset:8')
a('s_waitcnt lgkmcnt(0)')
a('global_load_dword v2, v1, s[10:11]')
a('global_load_dword v3, v1, s[10:11] offset:%d' % (8 * k))
a('s_barrier')
a('s_waitcnt vmcnt(0)')
a('ds_min_u32 v4, v2')
a('s_waitcnt lgkmcnt(0)')
a('s_barrier')
a('ds_read_b32 v7, v4')
a('s_waitcnt lgkmcnt(0)')
a('v_sub_u32 v3, v3, v7')
a('ds_max_u32 v4, v3 offset:4')
a('ds_add_u32 v4, v3 offset:8')
a('s_waitcnt lgkmcnt(0)')
a('s_barrier')
a('ds_read_b32 v8, v4 offset:%d' % (8 if med else 4))
a('s_memrealtime s[12:13]')
a('s_waitcnt lgkmcnt(0)')
a('v_readfirstlane_b32 s14, v8')
if med:
    a('s_lshr_b32 s14, s14, 8')
a('s_min_u32 s14, s14, 10000')
a('s_mul_i32 s14, s14, %d' % K)
a.label('D_loop')
a('s_memrealtime s[16:17]')
a('s_waitcnt lgkmcnt(0)')
a('s_sub_u32 s18, s16, s12')
a('s_cmp_lt_u32 s18, s14')
a('s_cbranch_scc1 D_loop')
a.label('D_end')
a('s_endpgm')
s = s.replace('.section .rodata,"a"\n', kernel_begin('dec_kernel') + a.text() + '.section .rodata,"a"\n.p2align 6\n' + descriptor('dec_kernel', 16, 16, 32))
open(out, 'w').write(s)
```
